```python
import torch

def _softmax(x, axis=-1):
    return torch.softmax(x, dim=axis)

def _gelu(x):
    return torch.nn.functional.gelu(x, approximate='tanh')

def _silu(x):
    return torch.nn.functional.silu(x)

def _sigmoid(x):
    return torch.sigmoid(x)

def _layernorm(x, axis=-1, eps=1e-05):
    m = x.mean(dim=axis, keepdim=True)
    v = x.var(dim=axis, keepdim=True, unbiased=False)
    return (x - m) / torch.sqrt(v + eps)

def _scatter_add(tgt, idx, src, axis=0):
    return tgt.clone().index_add_(axis, idx, src)

def _segment_sum(src, seg, n):
    out = torch.zeros((n,) + src.shape[1:], dtype=src.dtype)
    return out.index_add_(0, seg, src)

def _pad(x, pw):
    flat = tuple((v for pair in reversed(pw) for v in pair))
    return torch.nn.functional.pad(x, flat)
kernel_name = 'gather_scatter__molecular_angular_painn__graph'

def setup_inputs():

    _w = lambda a: (lambda t: t.to(torch.bfloat16) if t.is_floating_point() else t)(torch.as_tensor(a))
    N, deg, D = (10000, 16, 256)
    n_rbf = max(4, 4)
    E = N * deg
    cutoff = 5.0
    freqs = (torch.arange(1, n_rbf + 1) * torch.pi / cutoff).to(float)
    return {'sv': _w((lambda *s: torch.randn(*s, dtype=torch.bfloat16) * 0.4)(N, 4, D) * 0.3), 'pos': _w((lambda *s: torch.randn(*s, dtype=torch.bfloat16) * 3.2)(N, 3) * 1.2), 'src': _w((lambda lo, hi, *s: torch.randint(lo, hi, s))(0, N, E).to(torch.int64)), 'dst': _w((lambda lo, hi, *s: torch.randint(lo, hi, s))(0, N, E).to(torch.int64)), 'freqs': _w(freqs), 'w_phi1': _w((lambda *s: torch.randn(*s, dtype=torch.bfloat16) * 3.2)(D, D) / D ** 0.5), 'w_phi2': _w((lambda *s: torch.randn(*s, dtype=torch.bfloat16) * 3.2)(D, 3 * D) / D ** 0.5), 'w_rbf': _w((lambda *s: torch.randn(*s, dtype=torch.bfloat16) * 3.2)(n_rbf, 3 * D) / n_rbf ** 0.5)}

def reference(sv, pos, src, dst, freqs, w_phi1, w_phi2, w_rbf):
    N, _, D = sv.shape
    E = src.shape[0]
    PI, cutoff = (3.141592653589793, 5.0)
    s, v = (sv[:, 0, :].clone(), sv[:, 1:, :].clone())
    r_vec = pos[src] - pos[dst]
    d = torch.sqrt((r_vec * r_vec).sum(-1) + 1e-08)
    r_hat = r_vec / d[:, None]
    rbf = torch.sin(d[:, None] * freqs[None, :]) / d[:, None]
    fcut = 0.5 * (torch.cos(PI * d / cutoff) + 1.0)
    fcut = torch.where(d < cutoff, fcut, 0.0 * d)
    Wf = rbf @ w_rbf * fcut[:, None]
    phi = (_silu(s @ w_phi1) @ w_phi2)[src]
    m = phi * Wf
    m_s, m_vv, m_vr = (m[:, :D].clone(), m[:, D:2 * D].clone(), m[:, 2 * D:].clone())
    ds = _segment_sum(m_s, dst, N)
    dv_e = m_vv[:, None, :] * v[src] + m_vr[:, None, :] * r_hat[:, :, None]
    dv = _segment_sum(dv_e.reshape(E, 3 * D), dst, N).reshape(N, 3, D)
    return sv + torch.concatenate([ds[:, None, :], dv], axis=1)
```

```python
class Emitter:
    def __init__(self):
        self.lines = []
        self.vm = []
        self.lg = []
    def e(self, s):
        self.lines.append("    " + s)
    def label(self, s):
        self.lines.append(s + ":")
    def c(self, s):
        self.lines.append("    ; " + s)
    def vmem(self, s, tag):
        self.e(s); self.vm.append(tag)
    def lds(self, s, tag):
        self.e(s); self.lg.append(tag)
    def wait(self, vm=None, lg=None):
        parts = []
        if vm is not None and vm in self.vm:
            last = max(i for i, t in enumerate(self.vm) if t == vm)
            n = len(self.vm) - 1 - last
            assert n <= 63
            parts.append("vmcnt(%d)" % n)
            self.vm = self.vm[last + 1:]
        if lg is not None and lg in self.lg:
            last = max(i for i, t in enumerate(self.lg) if t == lg)
            n = len(self.lg) - 1 - last
            assert n <= 15
            parts.append("lgkmcnt(%d)" % n)
            self.lg = self.lg[last + 1:]
        if parts:
            self.e("s_waitcnt " + " ".join(parts))
    def waitall(self):
        self.e("s_waitcnt vmcnt(0) lgkmcnt(0)")
        self.vm = []; self.lg = []
    def text(self):
        return "\n".join(self.lines) + "\n"

def srd(E, d, lo, hi, size):
    E.e(f"s_mov_b32 s{d}, s{lo}")
    E.e(f"s_and_b32 s{d+1}, s{hi}, 0xffff")
    E.e(f"s_mov_b32 s{d+2}, {size}")
    E.e(f"s_mov_b32 s{d+3}, 0x20000")

def srd_off(E, d, lo, hi, off, size):
    E.e(f"s_add_u32 s{d}, s{lo}, {off}")
    E.e(f"s_addc_u32 s{d+1}, s{hi}, 0")
    E.e(f"s_and_b32 s{d+1}, s{d+1}, 0xffff")
    E.e(f"s_mov_b32 s{d+2}, {size}")
    E.e(f"s_mov_b32 s{d+3}, 0x20000")

N = 10000; EDG = 160000; D = 256
NWG = 250
SEG = 640
BINW = 40
WS_PHI = 0; PHI_BYTES = N * 1536
WS_REC = 0x1000000; REC_BYTES = EDG * 32
WS_BIN = 0x1600000; BIN_BYTES = EDG
WS_CNT = 0x1700000; CNT_BYTES = NWG * 4
```

```python
from common import *

RT = 5
ROWS = 80
LSTR = 544
S_OFF = 0
H_OFF = ROWS * LSTR
C_OFF = 2 * ROWS * LSTR
K1_LDS = C_OFF + 64

SV, W1, W2, PHI, POS, SRC, DST, REC, BIN, CNT = 24, 28, 32, 36, 40, 44, 48, 52, 56, 60
sWAVE, sRB, sHALF, sSOFF, sSELLO, sSELHI, sT0, sT1 = 64, 65, 66, 67, 68, 69, 70, 71
vLANE, vB1, vB2, vAR, vHW, vPH = 1, 2, 3, 4, 5, 6
A0 = 12; OPB = 52; RAW = 60; ACC = 124
NV = 208

def acc_reg(idx):
    if idx < 20: return ("v", ACC + 4 * idx)
    return ("a", 4 * (idx - 20))

def gemm(E, name, NT, nslots, rawreg, issue_loads, abase, accidx):
    KS = 8
    def areads(ks):
        for r in range(RT):
            E.lds(f"ds_read_b128 v[{A0+(ks&1)*20+4*r}:{A0+(ks&1)*20+4*r+3}], v{vAR} offset:{abase + r*16*LSTR + ks*64}", (name, "A", ks))
    def perms(ks, t):
        out = []
        ob = OPB + 4 * ((ks * NT + t) & 1)
        for m in range(4):
            r0, h = rawreg(ks % nslots, 2*m, t)
            r1, _ = rawreg(ks % nslots, 2*m+1, t)
            sel = sSELHI if h else sSELLO
            out.append(f"v_perm_b32 v{ob+m}, v{r1}, v{r0}, s{sel}")
        return out
    areads(0)
    E.wait(vm=(name, 0))
    for p in perms(0, 0): E.e(p)
    E.e("s_nop 1")
    for ks in range(KS):
        if ks + 1 < KS: areads(ks + 1)
        E.wait(lg=(name, "A", ks))
        for t in range(NT):
            ob = OPB + 4 * ((ks * NT + t) & 1)
            nxt = []
            if t + 1 < NT: nxt = perms(ks, t + 1)
            elif ks + 1 < KS:
                nxt = perms(ks + 1, 0)
            fill = {0: nxt[0:2], 1: nxt[2:4]}
            for r in range(RT):
                kind, b = acc_reg(accidx(r, t))
                d = f"{kind}[{b}:{b+3}]"
                cc = "0" if ks == 0 else d
                a = A0 + (ks & 1) * 20 + 4 * r
                E.e(f"v_mfma_f32_16x16x32_bf16 {d}, v[{a}:{a+3}], v[{ob}:{ob+3}], {cc}")
                if r == 0 and t + 1 == NT and ks + 1 < KS:
                    E.wait(vm=(name, ks + 1))
                for p in fill.get(r, []): E.e(p)
                if r == 2 and t + 1 == NT and ks + nslots < KS:
                    issue_loads(ks + nslots)

def k1(E):
    E.label("k_phi_kernel")
    E.e("s_cmp_ge_u32 s2, %d" % NWG)
    E.e("s_cbranch_scc1 K1_END")
    E.e("s_load_dwordx8 s[4:11], s[0:1], 0")
    E.e("s_load_dwordx8 s[12:19], s[0:1], 32")
    E.e("s_load_dwordx2 s[20:21], s[0:1], 80")
    E.e(f"v_lshrrev_b32 v2, 6, v0")
    E.e(f"v_and_b32 v{vLANE}, 63, v0")
    E.e(f"s_lshr_b32 s{sRB}, s2, 1")
    E.e(f"v_readfirstlane_b32 s{sWAVE}, v2")
    E.e(f"s_and_b32 s{sHALF}, s2, 1")
    E.e(f"s_mul_i32 s{sRB}, s{sRB}, {ROWS}")
    E.e(f"s_mov_b32 s{sSELLO}, 0x05040100")
    E.e(f"s_mov_b32 s{sSELHI}, 0x07060302")
    E.e("v_lshrrev_b32 v7, 5, v0")
    E.e("v_and_b32 v8, 31, v0")
    E.e("v_lshlrev_b32 v8, 4, v8")
    E.e(f"v_add_u32 v9, s{sRB}, v7")
    E.e("v_lshl_add_u32 v9, v9, 11, v8")
    E.e(f"v_mul_u32_u24 v7, {LSTR}, v7")
    E.e("v_add_u32 v7, v7, v8")
    E.e("s_waitcnt lgkmcnt(0)")
    srd(E, SV, 4, 5, N * 2048)
    for i in range(5):
        E.e(f"s_mov_b32 s{sSOFF}, {i * 16 * 2048}")
        E.vmem(f"buffer_load_dwordx4 v[{A0+4*i}:{A0+4*i+3}], v9, s[{SV}:{SV+3}], s{sSOFF} offen", "stage")
    E.e("v_mov_b32 v10, 0")
    E.e("v_mov_b32 v11, 0")
    E.e(f"v_mov_b32 v8, {C_OFF}")
    E.e("ds_write_b64 v8, v[10:11]")
    E.e(f"s_cmp_ge_u32 s{sWAVE}, 4")
    E.e("s_cbranch_scc1 K1_PREP")

    srd(E, W1, 14, 15, 256 * 512)
    srd(E, W2, 16, 17, 256 * 1536)
    srd_off(E, PHI, 20, 21, WS_PHI, PHI_BYTES)
    E.e(f"v_and_b32 v10, 15, v{vLANE}")
    E.e(f"v_lshrrev_b32 v11, 4, v{vLANE}")
    E.e(f"s_lshl_b32 s{sT0}, s{sWAVE}, 7")
    E.e(f"v_lshlrev_b32 v{vB1}, 12, v11")
    E.e(f"v_lshl_add_u32 v{vB1}, v10, 3, v{vB1}")
    E.e(f"v_add_u32 v{vB1}, s{sT0}, v{vB1}")
    def load1(ks):
        E.e(f"s_mov_b32 s{sSOFF}, {ks * 32 * 512}")
        for i in range(8):
            r = RAW + (ks % 3) * 16 + 2 * i
            E.vmem(f"buffer_load_dwordx2 v[{r}:{r+1}], v{vB1}, s[{W1}:{W1+3}], s{sSOFF} offen offset:{i*512}", ("g1", ks))
    for ks in range(3): load1(ks)
    E.e(f"s_mul_i32 s{sT0}, s{sHALF}, 768")
    E.e(f"s_mul_i32 s{sT1}, s{sWAVE}, 192")
    E.e(f"s_add_u32 s{sT0}, s{sT0}, s{sT1}")
    E.e(f"v_mul_u32_u24 v{vB2}, 12, v10")
    E.e(f"v_add_u32 v{vB2}, s{sT0}, v{vB2}")
    E.e(f"v_mul_u32_u24 v{vPH}, {4*1536}, v11")
    E.e(f"v_add_u32 v{vPH}, v{vPH}, v{vB2}")
    E.e(f"s_mul_i32 s{sT1}, s{sRB}, 1536")
    E.e(f"v_add_u32 v{vPH}, s{sT1}, v{vPH}")
    E.e(f"v_mul_u32_u24 v8, {8*1536}, v11")
    E.e(f"v_add_u32 v{vB2}, v8, v{vB2}")
    E.e(f"v_mul_u32_u24 v{vAR}, {LSTR}, v10")
    E.e(f"v_lshl_add_u32 v{vAR}, v11, 4, v{vAR}")
    E.e(f"s_lshl_b32 s{sT0}, s{sWAVE}, 7")
    E.e(f"s_add_u32 s{sT0}, s{sT0}, {H_OFF}")
    E.e(f"v_mul_u32_u24 v{vHW}, {4*LSTR}, v11")
    E.e(f"v_lshl_add_u32 v{vHW}, v10, 3, v{vHW}")
    E.e(f"v_add_u32 v{vHW}, s{sT0}, v{vHW}")
    E.wait(vm="stage")
    for i in range(5):
        E.e(f"ds_write_b128 v7, v[{A0+4*i}:{A0+4*i+3}] offset:{i*16*LSTR}")
    E.e("s_waitcnt lgkmcnt(0)")
    E.e("s_barrier")
    gemm(E, "g1", 4, 3, lambda slot, i, t: (RAW + slot * 16 + 2 * i + (t >> 1), t & 1), load1, S_OFF, lambda r, t: r * 4 + t)
    def load2(ks):
        for i in range(8):
            if i % 3 == 0:
                E.e(f"s_mov_b32 s{sSOFF}, {(ks * 32 + i) * 1536}")
            r = RAW + (ks % 2) * 32 + 4 * i
            E.vmem(f"buffer_load_dwordx3 v[{r}:{r+2}], v{vB2}, s[{W2}:{W2+3}], s{sSOFF} offen offset:{(i%3)*1536}", ("g2", ks))
    load2(0); load2(1)
    E.e("s_nop 7")
    E.e(f"s_mov_b32 s{sT0}, 0xbfb8aa3b")
    for r in range(RT):
        for ip in range(4):
            x = [ACC + 4 * (r * 4 + t) + ip for t in range(4)]
            T = A0 + ((r * 4 + ip) & 3) * 8
            for t in range(4): E.e(f"v_mul_f32 v{T+t}, s{sT0}, v{x[t]}")
            for t in range(4): E.e(f"v_exp_f32 v{T+t}, v{T+t}")
            for t in range(4): E.e(f"v_add_f32 v{T+t}, 1.0, v{T+t}")
            for t in range(4): E.e(f"v_rcp_f32 v{T+t}, v{T+t}")
            for t in range(4): E.e(f"v_mul_f32 v{T+t}, v{T+t}, v{x[t]}")
            E.e(f"v_cvt_pk_bf16_f32 v{T+4}, v{T}, v{T+1}")
            E.e(f"v_cvt_pk_bf16_f32 v{T+5}, v{T+2}, v{T+3}")
            E.e(f"ds_write_b64 v{vHW}, v[{T+4}:{T+5}] offset:{(16*r+ip)*LSTR}")
    E.e("s_waitcnt lgkmcnt(0)")
    E.e(f"v_mov_b32 v8, {C_OFF}")
    E.e("v_mov_b32 v9, 1")
    E.e("s_mov_b64 exec, 1")
    E.e("ds_add_u32 v8, v9")
    E.e("s_mov_b64 exec, -1")
    E.label("K1_SPIN")
    E.e("ds_read_b32 v9, v8")
    E.e("s_waitcnt lgkmcnt(0)")
    E.e(f"v_readfirstlane_b32 s{sT0}, v9")
    E.e(f"s_cmp_lt_u32 s{sT0}, 4")
    E.e("s_cbranch_scc1 K1_SPIN")
    E.e(f"v_add_u32 v{vAR}, {H_OFF}, v{vAR}")
    gemm(E, "g2", 6, 2, lambda slot, i, t: (RAW + slot * 32 + 4 * i + (t >> 1), t & 1), load2, 0, lambda r, t: r * 6 + t)
    E.e("s_nop 7")
    for r in range(RT):
        for ip in range(4):
            T = A0 + ((r * 4 + ip) % 4) * 10
            xs = []
            for t in range(6):
                kind, b = acc_reg(r * 6 + t)
                if kind == "a":
                    E.e(f"v_accvgpr_read_b32 v{T+4+t}, a{b+ip}")
                    xs.append(T + 4 + t)
                else:
                    xs.append(b + ip)
            for m in range(3):
                E.e(f"v_cvt_pk_bf16_f32 v{T+m}, v{xs[2*m]}, v{xs[2*m+1]}")
            E.e(f"s_mov_b32 s{sSOFF}, {(16*r+ip)*1536}")
            E.e(f"buffer_store_dwordx3 v[{T}:{T+2}], v{vPH}, s[{PHI}:{PHI+3}], s{sSOFF} offen")
    E.e("s_endpgm")

    E.label("K1_PREP")
    E.vm = ["stage"] * 5; E.lg = []
    srd(E, POS, 6, 7, N * 6)
    srd(E, SRC, 8, 9, EDG * 4)
    srd(E, DST, 10, 11, EDG * 4)
    srd_off(E, REC, 20, 21, WS_REC, REC_BYTES)
    srd_off(E, BIN, 20, 21, WS_BIN, BIN_BYTES)
    srd_off(E, CNT, 20, 21, WS_CNT, CNT_BYTES)
    E.e("s_load_dwordx2 s[72:73], s[12:13], 0")
    E.e(f"s_mul_i32 s{sT0}, s2, {SEG}")
    E.e(f"s_sub_u32 s{sT1}, s{sWAVE}, 4")
    E.e(f"s_mul_i32 s{sT1}, s{sT1}, 160")
    E.e(f"s_add_u32 s{sT1}, s{sT0}, s{sT1}")
    E.e(f"v_add_u32 v2, s{sT1}, v{vLANE}")
    E.e("v_lshlrev_b32 v2, 2, v2")
    vS, vD = 60, 64
    for i in range(3):
        E.vmem(f"buffer_load_dword v{vS+i}, v2, s[{SRC}:{SRC+3}], 0 offen offset:{i*256}", "sd")
        E.vmem(f"buffer_load_dword v{vD+i}, v2, s[{DST}:{DST+3}], 0 offen offset:{i*256}", "sd")
    E.wait(vm="stage")
    for i in range(5):
        E.e(f"ds_write_b128 v7, v[{A0+4*i}:{A0+4*i+3}] offset:{i*16*LSTR}")
    E.e("s_waitcnt lgkmcnt(0)")
    E.e("s_barrier")
    E.wait(vm="sd")
    vP = 70
    for i in range(3):
        for (reg, o) in ((vS + i, 0), (vD + i, 2)):
            E.e(f"v_mul_u32_u24 v3, 6, v{reg}")
            E.e("v_and_b32 v3, -4, v3")
            E.vmem(f"buffer_load_dwordx2 v[{vP+4*i+o}:{vP+4*i+o+1}], v3, s[{POS}:{POS+3}], 0 offen", ("pos", i))
    E.e("s_lshl_b32 s74, s72, 16")
    E.e("s_and_b32 s75, s72, 0xffff0000")
    E.e("s_lshl_b32 s76, s73, 16")
    E.e("s_and_b32 s77, s73, 0xffff0000")
    E.e("s_mov_b32 s78, 0x40490fdb")
    E.e("s_mov_b32 s79, 0x3e4ccccd")
    E.e("s_mov_b32 s80, 0x322bcc77")
    E.e("s_mov_b32 s81, 0x40a00000")
    E.e("s_mov_b32 s82, 0xffff0000")
    def rb(x):
        E.e(f"v_cvt_pk_bf16_f32 v{x}, v{x}, v{x}")
        E.e(f"v_and_b32 v{x}, s82, v{x}")
    for i in range(3):
        R = 100 + 8 * i
        E.wait(vm=("pos", i))
        ps, pd = vP + 4 * i, vP + 4 * i + 2
        for (p, idx) in ((ps, vS + i), (pd, vD + i)):
            E.e(f"v_and_b32 v3, 1, v{idx}")
            E.e("v_lshlrev_b32 v3, 4, v3")
            E.e(f"v_lshrrev_b64 v[{p}:{p+1}], v3, v[{p}:{p+1}]")
        E.e(f"v_lshlrev_b32 v10, 16, v{ps}"); E.e(f"v_lshlrev_b32 v4, 16, v{pd}"); E.e("v_sub_f32 v10, v10, v4")
        E.e(f"v_and_b32 v11, s82, v{ps}"); E.e(f"v_and_b32 v4, s82, v{pd}"); E.e("v_sub_f32 v11, v11, v4")
        E.e(f"v_lshlrev_b32 v12, 16, v{ps+1}"); E.e(f"v_lshlrev_b32 v4, 16, v{pd+1}"); E.e("v_sub_f32 v12, v12, v4")
        for x in (10, 11, 12): rb(x)
        for k in range(3):
            E.e(f"v_mul_f32 v{13+k}, v{10+k}, v{10+k}")
        for x in (13, 14, 15): rb(x)
        E.e("v_add_f32 v13, v13, v14"); E.e("v_add_f32 v13, v13, v15"); rb(13)
        E.e("v_add_f32 v13, s80, v13"); rb(13)
        E.e("v_sqrt_f32 v13, v13"); E.e("s_nop 0"); rb(13)
        E.e("v_rcp_f32 v14, v13")
        E.e("v_mul_f32 v15, s78, v13"); rb(15)
        E.e("v_mul_f32 v15, s79, v15"); rb(15)
        E.e("v_mul_f32 v15, 0.15915494, v15")
        E.e("v_cos_f32 v15, v15"); E.e("s_nop 0"); rb(15)
        E.e("v_add_f32 v15, 1.0, v15"); rb(15)
        E.e(f"v_mul_f32 v{R+3}, 0.5, v15")
        for k in range(4):
            E.e(f"v_mul_f32 v{16+k}, s{74+k}, v13")
        for k in range(4): rb(16 + k)
        for k in range(4): E.e(f"v_mul_f32 v{16+k}, 0.15915494, v{16+k}")
        for k in range(4): E.e(f"v_sin_f32 v{16+k}, v{16+k}")
        E.e("s_nop 0")
        for k in range(4): rb(16 + k)
        for k in range(4): E.e(f"v_mul_f32 v{16+k}, v{16+k}, v14")
        E.e(f"v_cvt_pk_bf16_f32 v{R+1}, v16, v17")
        E.e(f"v_cvt_pk_bf16_f32 v{R+2}, v18, v19")
        for k in range(3): E.e(f"v_mul_f32 v{10+k}, v{10+k}, v14")
        for k in range(3): rb(10 + k)
        for k in range(3): E.e(f"v_mul_f32 v{R+4+k}, v{10+k}, v{R+3}")
        E.e(f"v_mov_b32 v{R}, v{vS+i}")
        E.e(f"v_mov_b32 v{R+7}, v{vD+i}")
        m = 84 + 2 * i
        E.e(f"v_cmp_gt_f32 s[{m}:{m+1}], s81, v13")
        E.e(f"v_cmp_neq_f32 vcc, 0, v{R+3}")
        E.e("s_nop 1")
        E.e(f"s_and_b64 s[{m}:{m+1}], s[{m}:{m+1}], vcc")
        if i == 2:
            E.e(f"s_mov_b32 s{m+1}, 0")
    E.e("s_bcnt1_i32_b64 s90, s[84:85]")
    E.e("s_bcnt1_i32_b64 s91, s[86:87]")
    E.e("s_bcnt1_i32_b64 s92, s[88:89]")
    E.e("s_add_u32 s93, s90, s91")
    E.e("s_add_u32 s93, s93, s92")
    E.e("s_add_u32 s94, s93, 0x10000")
    E.e(f"v_mov_b32 v8, {C_OFF+4}")
    E.e("v_mov_b32 v9, s94")
    E.e("s_mov_b64 exec, 1")
    E.e("ds_add_rtn_u32 v9, v8, v9")
    E.e("s_waitcnt lgkmcnt(0)")
    E.e("s_mov_b64 exec, -1")
    E.e("v_readfirstlane_b32 s94, v9")
    E.e("s_and_b32 s95, s94, 0xffff")
    E.e("s_lshr_b32 s94, s94, 16")
    E.e(f"s_mul_i32 s{sT0}, s2, {SEG}")
    E.e(f"s_add_u32 s96, s{sT0}, s95")
    E.e("s_mov_b32 s97, 52429")
    for i in range(3):
        R = 100 + 8 * i; m = 84 + 2 * i
        E.e(f"v_mbcnt_lo_u32_b32 v3, s{m}, 0")
        E.e(f"v_mbcnt_hi_u32_b32 v3, s{m+1}, v3")
        E.e("v_add_u32 v3, s96, v3")
        E.e("v_lshlrev_b32 v4, 5, v3")
        E.e(f"v_mul_lo_u32 v5, s97, v{R+7}")
        E.e("v_lshrrev_b32 v5, 21, v5")
        E.e(f"s_mov_b64 exec, s[{m}:{m+1}]")
        E.e(f"s_cbranch_execz K1_NOREC{i}")
        E.e(f"buffer_store_dwordx4 v[{R}:{R+3}], v4, s[{REC}:{REC+3}], 0 offen")
        E.e(f"buffer_store_dwordx4 v[{R+4}:{R+7}], v4, s[{REC}:{REC+3}], 0 offen offset:16")
        E.e(f"buffer_store_byte v5, v3, s[{BIN}:{BIN+3}], 0 offen")
        E.label(f"K1_NOREC{i}")
        E.e("s_mov_b64 exec, -1")
        if i < 2: E.e(f"s_add_u32 s96, s96, s{90+i}")
        E.e("s_nop 1")
    E.e("s_cmp_lg_u32 s94, 3")
    E.e("s_cbranch_scc1 K1_END")
    E.e("s_add_u32 s95, s95, s93")
    E.e("v_mov_b32 v4, s95")
    E.e("s_lshl_b32 s96, s2, 2")
    E.e("v_mov_b32 v3, s96")
    E.e("s_mov_b64 exec, 1")
    E.e(f"buffer_store_dword v4, v3, s[{CNT}:{CNT+3}], 0 offen")
    E.label("K1_END")
    E.e("s_endpgm")
```

```python
from common import *

CAP_NODE = 32
L_CAND = 0
L_NCNT = 4096
L_CTR = 4096 + 192
L_REC = 8192
K2_LDS = L_REC + BINW * CAP_NODE * 32

SV, PHI, OUT, REC, BIN, CNT, WR = 24, 28, 32, 36, 40, 44, 48
sWAVE, sBIN, sNB, sT0, sT1, sT2, sN, sK, sJ, sOP, sOV, sROW = 64, 65, 66, 67, 68, 69, 70, 71, 72, 73, 74, 75
sMASK = 76
sHI = 78
vLANE, vL8 = 1, 2
W = 4
ACC = 28
RES = 44
LD = 52
RC = 100
TM = 108
NV2 = 128

def edge_compute(E, b):
    wf = TM
    for sec in range(3):
        for c in range(4):
            E.e(f"v_dot2_f32_bf16 v{wf+sec*4+c}, v{RC+1}, v{W+sec*8+c*2}, 0")
    for sec in range(3):
        for c in range(4):
            E.e(f"v_dot2_f32_bf16 v{wf+sec*4+c}, v{RC+2}, v{W+sec*8+c*2+1}, v{wf+sec*4+c}")
    u = TM + 12
    def unpack(reg):
        E.e(f"v_lshlrev_b32 v{u}, 16, v{reg}")
        E.e(f"v_and_b32 v{u+1}, s{sHI}, v{reg}")
        E.e(f"v_lshlrev_b32 v{u+2}, 16, v{reg+1}")
        E.e(f"v_and_b32 v{u+3}, s{sHI}, v{reg+1}")
    unpack(b)
    for c in range(4): E.e(f"v_mul_f32 v{wf+c}, v{wf+c}, v{u+c}")
    for c in range(4): E.e(f"v_fma_f32 v{ACC+c}, v{wf+c}, v{RC+3}, v{ACC+c}")
    unpack(b + 2)
    for c in range(4): E.e(f"v_mul_f32 v{wf+4+c}, v{wf+4+c}, v{u+c}")
    for c in range(4): E.e(f"v_mul_f32 v{wf+4+c}, v{wf+4+c}, v{RC+3}")
    unpack(b + 4)
    for c in range(4): E.e(f"v_mul_f32 v{wf+8+c}, v{wf+8+c}, v{u+c}")
    for x in range(3):
        unpack(b + 6 + 2 * x)
        for c in range(4): E.e(f"v_fma_f32 v{ACC+4+4*x+c}, v{wf+4+c}, v{u+c}, v{ACC+4+4*x+c}")
        for c in range(4): E.e(f"v_fma_f32 v{ACC+4+4*x+c}, v{wf+8+c}, v{RC+4+x}, v{ACC+4+4*x+c}")

def edge_loads(E, b, tag):
    for sec in range(3):
        E.vmem(f"buffer_load_dwordx2 v[{b+2*sec}:{b+2*sec+1}], v{vL8}, s[{PHI}:{PHI+3}], s{sOP} offen offset:{sec*512}", tag)
    for x in range(3):
        E.vmem(f"buffer_load_dwordx2 v[{b+6+2*x}:{b+7+2*x}], v{vL8}, s[{SV}:{SV+3}], s{sOV} offen offset:{512+x*512}", tag)

def res_loads(E):
    for q in range(4):
        E.vmem(f"buffer_load_dwordx2 v[{RES+2*q}:{RES+2*q+1}], v{vL8}, s[{SV}:{SV+3}], s{sROW} offen offset:{q*512}", "res")

def finish_node(E):
    u = TM
    for q in range(4):
        E.e(f"v_lshlrev_b32 v{u}, 16, v{RES+2*q}")
        E.e(f"v_and_b32 v{u+1}, s{sHI}, v{RES+2*q}")
        E.e(f"v_lshlrev_b32 v{u+2}, 16, v{RES+2*q+1}")
        E.e(f"v_and_b32 v{u+3}, s{sHI}, v{RES+2*q+1}")
        for c in range(4): E.e(f"v_add_f32 v{u+c}, v{u+c}, v{ACC+4*q+c}")
        o = TM + 4 + 2 * q
        E.e(f"v_cvt_pk_bf16_f32 v{o}, v{u}, v{u+1}")
        E.e(f"v_cvt_pk_bf16_f32 v{o+1}, v{u+2}, v{u+3}")
        E.e(f"buffer_store_dwordx2 v[{o}:{o+1}], v{vL8}, s[{OUT}:{OUT+3}], s{sROW} offen offset:{q*512}")

def k2(E):
    E.label("k_edge_kernel")
    E.e("s_cmp_ge_u32 s2, %d" % NWG)
    E.e("s_cbranch_scc1 K2_END")
    E.e("s_load_dwordx2 s[4:5], s[0:1], 0")
    E.e("s_load_dwordx2 s[6:7], s[0:1], 56")
    E.e("s_load_dwordx2 s[8:9], s[0:1], 64")
    E.e("s_load_dwordx2 s[10:11], s[0:1], 80")
    E.e("v_lshrrev_b32 v3, 6, v0")
    E.e(f"v_and_b32 v{vLANE}, 63, v0")
    E.e(f"v_lshlrev_b32 v{vL8}, 3, v{vLANE}")
    E.e(f"v_readfirstlane_b32 s{sWAVE}, v3")
    E.e(f"s_mul_i32 s{sNB}, s2, {BINW}")
    E.e(f"s_mov_b32 s{sHI}, 0xffff0000")
    E.e("v_mov_b32 v3, 0")
    E.e(f"v_cmp_eq_u32 vcc, {(L_CTR + 4 - L_NCNT)//4}, v0")
    E.e("s_nop 1")
    E.e("v_cndmask_b32 v3, v3, 16, vcc")
    E.e("v_lshlrev_b32 v100, 2, v0")
    E.e("v_cmp_gt_u32 vcc, 64, v0")
    E.e(f"s_and_saveexec_b64 s[{sMASK}:{sMASK+1}], vcc")
    E.e(f"ds_write_b32 v100, v3 offset:{L_NCNT}")
    E.e(f"s_mov_b64 exec, s[{sMASK}:{sMASK+1}]")
    E.e("s_waitcnt lgkmcnt(0)")
    srd(E, SV, 4, 5, N * 2048)
    srd(E, WR, 6, 7, 4 * 1536)
    srd(E, OUT, 8, 9, N * 2048)
    srd_off(E, PHI, 10, 11, WS_PHI, PHI_BYTES)
    srd_off(E, REC, 10, 11, WS_REC, REC_BYTES)
    srd_off(E, BIN, 10, 11, WS_BIN, BIN_BYTES)
    srd_off(E, CNT, 10, 11, WS_CNT, CNT_BYTES)
    SC = LD
    vSEG, vOFF, vCN = LD + 8, LD + 10, LD + 12
    for i in range(2):
        E.e(f"v_add_u32 v3, {1024*i}, v0")
        E.e(f"v_lshrrev_b32 v{vSEG+i}, 3, v3")
        E.e("v_and_b32 v3, 7, v3")
        E.e("v_lshlrev_b32 v3, 4, v3")
        E.e(f"v_mul_u32_u24 v{vOFF+i}, {SEG}, v{vSEG+i}")
        E.e(f"v_add_u32 v{vOFF+i}, v{vOFF+i}, v3")
        E.e(f"v_lshlrev_b32 v100, 2, v{vSEG+i}")
        E.vmem(f"buffer_load_dword v{vCN+i}, v100, s[{CNT}:{CNT+3}], 0 offen", "scan")
        E.vmem(f"buffer_load_dwordx4 v[{SC+4*i}:{SC+4*i+3}], v{vOFF+i}, s[{BIN}:{BIN+3}], 0 offen", "scan")
        E.e(f"v_mov_b32 v{vCN+2+i}, v3")
    WT = LD + 16
    for k in range(4):
        for sec in range(3):
            r = WT + (k * 3 + sec) * 2
            E.vmem(f"buffer_load_dwordx2 v[{r}:{r+1}], v{vL8}, s[{WR}:{WR+3}], 0 offen offset:{sec*512}" if k == 0 else
                   f"buffer_load_dwordx2 v[{r}:{r+1}], v{vL8}, s[{WR}:{WR+3}], s{sT0} offen offset:{sec*512}", "w")
        E.e(f"s_mov_b32 s{sT0}, {(k+1)*1536}")
    E.e(f"s_add_u32 s{sN}, s{sNB}, s{sWAVE}")
    E.e(f"s_lshl_b32 s{sROW}, s{sN}, 11")
    res_loads(E)
    E.e("s_barrier")
    E.e(f"s_mul_i32 s{sT0}, s2, 0x01010101")
    E.e(f"s_mov_b32 s{sT1}, 0x7f7f7f7f")
    E.e(f"s_mov_b32 s{sT2}, 0x80808080")
    E.wait(vm="scan")
    for i in range(2): E.e(f"v_min_u32 v{vCN+i}, {SEG}, v{vCN+i}")
    def match(i, lab):
        d = SC + 4 * i
        for q in range(4):
            E.e(f"v_xor_b32 v{d+q}, s{sT0}, v{d+q}")
        for q in range(4):
            E.e(f"v_and_b32 v{TM+q}, s{sT1}, v{d+q}")
        for q in range(4):
            E.e(f"v_add_u32 v{TM+q}, s{sT1}, v{TM+q}")
        for q in range(4):
            E.e(f"v_or_b32 v{TM+q}, v{TM+q}, v{d+q}")
        for q in range(4):
            E.e(f"v_not_b32 v{TM+q}, v{TM+q}")
            E.e(f"v_and_b32 v{TM+q}, s{sT2}, v{TM+q}")
        E.e(f"v_lshrrev_b32 v{TM}, 7, v{TM}")
        for q in range(1, 4):
            E.e(f"v_lshrrev_b32 v{TM+q}, {7-q}, v{TM+q}")
            E.e(f"v_or_b32 v{TM}, v{TM}, v{TM+q}")
        E.e(f"v_mov_b32 v{TM+8}, {L_CTR}")
        E.e(f"v_mov_b32 v{TM+9}, 1")
        E.label(f"{lab}_LOOP")
        E.e(f"v_cmp_ne_u32 vcc, 0, v{TM}")
        E.e(f"s_and_saveexec_b64 s[{sMASK}:{sMASK+1}], vcc")
        E.e(f"s_cbranch_execz {lab}_DONE")
        E.e(f"v_ffbl_b32 v{TM+1}, v{TM}")
        E.e(f"v_add_u32 v{TM+2}, -1, v{TM}")
        E.e(f"v_and_b32 v{TM}, v{TM}, v{TM+2}")
        E.e(f"v_and_b32 v{TM+2}, 7, v{TM+1}")
        E.e(f"v_lshrrev_b32 v{TM+1}, 3, v{TM+1}")
        E.e(f"v_lshl_add_u32 v{TM+1}, v{TM+2}, 2, v{TM+1}")
        E.e(f"v_add_u32 v{TM+2}, v{TM+1}, v{vCN+2+i}")
        E.e(f"v_add_u32 v{TM+1}, v{TM+1}, v{vOFF+i}")
        E.e(f"v_cmp_lt_u32 vcc, v{TM+2}, v{vCN+i}")
        E.e(f"s_and_b64 exec, exec, vcc")
        E.e(f"s_cbranch_execz {lab}_SKIP")
        E.e(f"ds_add_rtn_u32 v{TM+3}, v{TM+8}, v{TM+9}")
        E.e("s_waitcnt lgkmcnt(0)")
        E.e(f"v_cmp_gt_u32 vcc, 1024, v{TM+3}")
        E.e(f"s_and_b64 exec, exec, vcc")
        E.e(f"v_lshlrev_b32 v{TM+3}, 2, v{TM+3}")
        E.e(f"ds_write_b32 v{TM+3}, v{TM+1} offset:{L_CAND}")
        E.label(f"{lab}_SKIP")
        E.e(f"s_mov_b64 exec, s[{sMASK}:{sMASK+1}]")
        E.e(f"s_branch {lab}_LOOP")
        E.label(f"{lab}_DONE")
        E.e(f"s_mov_b64 exec, s[{sMASK}:{sMASK+1}]")
    for i in range(2): match(i, f"K2_M{i}")
    E.label("K2_ROUND")
    for i in range(2):
        E.e(f"v_add_u32 v{vCN+2+i}, 128, v{vCN+2+i}")
        E.e(f"v_add_u32 v{vOFF+i}, 128, v{vOFF+i}")
    E.e(f"v_and_b32 v3, -128, v{vCN+2}")
    E.e(f"v_cmp_lt_u32 s[{sMASK}:{sMASK+1}], v3, v{vCN}")
    E.e(f"v_and_b32 v3, -128, v{vCN+3}")
    E.e(f"v_cmp_lt_u32 vcc, v3, v{vCN+1}")
    E.e("s_nop 1")
    E.e(f"s_or_b64 vcc, vcc, s[{sMASK}:{sMASK+1}]")
    E.e("s_cbranch_vccz K2_SCANNED")
    for i in range(2):
        E.e(f"buffer_load_dwordx4 v[{SC+4*i}:{SC+4*i+3}], v{vOFF+i}, s[{BIN}:{BIN+3}], 0 offen")
    E.e("s_waitcnt vmcnt(0)")
    for i in range(2): match(i, f"K2_R{i}")
    E.e("s_branch K2_ROUND")
    E.label("K2_SCANNED")
    E.e("s_waitcnt vmcnt(4)")
    E.e("s_mov_b32 s12, 0x05040100")
    E.e("s_mov_b32 s13, 0x07060302")
    for sec in range(3):
        for c in range(4):
            for h in range(2):
                r0 = WT + ((2*h) * 3 + sec) * 2 + (c >> 1)
                r1 = WT + ((2*h+1) * 3 + sec) * 2 + (c >> 1)
                E.e(f"v_perm_b32 v{W+sec*8+c*2+h}, v{r1}, v{r0}, s{13 if c & 1 else 12}")
    E.e("s_waitcnt lgkmcnt(0)")
    E.e("s_barrier")
    E.e(f"v_mov_b32 v3, {L_CTR}")
    E.e("ds_read_b32 v100, v3")
    E.e("v_lshlrev_b32 v101, 2, v0")
    E.e(f"ds_read_b32 v101, v101 offset:{L_CAND}")
    E.e("s_waitcnt lgkmcnt(0)")
    E.e(f"v_readfirstlane_b32 s{sK}, v100")
    E.e(f"s_cmp_gt_u32 s{sK}, 1024")
    E.e("s_cbranch_scc1 K2_SETOV")
    E.e(f"v_cmp_gt_u32 vcc, s{sK}, v0")
    E.e(f"s_and_saveexec_b64 s[{sMASK}:{sMASK+1}], vcc")
    E.e("s_cbranch_execz K2_BDONE")
    E.e("v_lshlrev_b32 v101, 5, v101")
    E.e(f"buffer_load_dwordx4 v[{LD}:{LD+3}], v101, s[{REC}:{REC+3}], 0 offen")
    E.e(f"buffer_load_dwordx4 v[{LD+4}:{LD+7}], v101, s[{REC}:{REC+3}], 0 offen offset:16")
    E.e("v_mov_b32 v102, 1")
    E.e("s_waitcnt vmcnt(0)")
    E.e(f"v_subrev_u32 v101, s{sNB}, v{LD+7}")
    E.e("v_lshlrev_b32 v103, 2, v101")
    E.e(f"ds_add_rtn_u32 v102, v103, v102 offset:{L_NCNT}")
    E.e("s_waitcnt lgkmcnt(0)")
    E.e(f"v_cmp_le_u32 vcc, {CAP_NODE}, v102")
    E.e("s_cbranch_vccz K2_NOOV")
    E.e(f"v_mov_b32 v103, {L_CTR}")
    E.e("v_mov_b32 v104, 1")
    E.e("ds_write_b32 v103, v104 offset:8")
    E.label("K2_NOOV")
    E.e(f"v_cmp_gt_u32 vcc, {CAP_NODE}, v102")
    E.e("s_and_b64 exec, exec, vcc")
    E.e("s_cbranch_execz K2_BDONE")
    E.e("v_lshl_add_u32 v101, v101, 5, v102")
    E.e("v_lshlrev_b32 v101, 5, v101")
    E.e(f"ds_write_b128 v101, v[{LD}:{LD+3}] offset:{L_REC}")
    E.e(f"ds_write_b128 v101, v[{LD+4}:{LD+7}] offset:{L_REC+16}")
    E.e("s_branch K2_BDONE")
    E.label("K2_SETOV")
    E.e(f"s_mov_b64 s[{sMASK}:{sMASK+1}], exec")
    E.e(f"v_mov_b32 v103, {L_CTR}")
    E.e("v_mov_b32 v104, 1")
    E.e("ds_write_b32 v103, v104 offset:8")
    E.label("K2_BDONE")
    E.e(f"s_mov_b64 exec, s[{sMASK}:{sMASK+1}]")
    E.e("s_waitcnt lgkmcnt(0)")
    E.e("s_barrier")
    E.e(f"v_mov_b32 v3, {L_CTR}")
    E.e("ds_read_b32 v100, v3 offset:8")
    E.e("s_waitcnt lgkmcnt(0)")
    E.e(f"v_readfirstlane_b32 s{sT0}, v100")
    E.e(f"s_cmp_lg_u32 s{sT0}, 0")
    E.e("s_cbranch_scc1 K2_SLOW")
    E.e(f"s_mov_b32 s{sJ}, s{sWAVE}")
    E.label("K2_NODE")
    E.e(f"s_lshl_b32 s{sT0}, s{sJ}, 2")
    E.e(f"v_mov_b32 v3, s{sT0}")
    E.e(f"ds_read_b32 v100, v3 offset:{L_NCNT}")
    E.e(f"s_lshl_b32 s{sT1}, s{sJ}, 10")
    E.e(f"v_and_b32 v101, 31, v{vLANE}")
    E.e(f"v_lshlrev_b32 v101, 5, v101")
    E.e(f"v_add_u32 v101, s{sT1}, v101")
    E.e(f"ds_read_b32 v3, v101 offset:{L_REC}")
    for a in range(16): E.e(f"v_mov_b32 v{ACC+a}, 0")
    E.e("s_waitcnt lgkmcnt(0)")
    E.e(f"v_readfirstlane_b32 s{sK}, v100")
    E.e(f"s_add_u32 s{sT1}, s{sT1}, {L_REC}")
    E.e(f"s_mov_b32 s{sT2}, 0")
    E.label("K2_BATCH")
    E.e(f"s_cmp_eq_u32 s{sK}, 0")
    E.e("s_cbranch_scc1 K2_FIN")
    def issue(j):
        E.e(f"v_readlane_b32 s{sT0}, v3, s{sT2}")
        E.e(f"s_add_u32 s{sT2}, s{sT2}, 1")
        E.e(f"s_mul_i32 s{sOP}, s{sT0}, 1536")
        E.e(f"s_lshl_b32 s{sOV}, s{sT0}, 11")
        edge_loads(E, LD + 12 * j, ("e", j))
    def comp(j):
        E.e(f"v_mov_b32 v{TM}, s{sT1}")
        E.e(f"ds_read_b128 v[{RC}:{RC+3}], v{TM}")
        E.e(f"ds_read_b128 v[{RC+4}:{RC+7}], v{TM} offset:16")
        E.e(f"s_add_u32 s{sT1}, s{sT1}, 32")
        E.wait(vm=("e", j))
        E.e("s_waitcnt lgkmcnt(0)")
        edge_compute(E, LD + 12 * j)
    for nb in (4, 3, 2, 1):
        if nb > 1:
            E.e(f"s_cmp_lt_u32 s{sK}, {nb}")
            E.e(f"s_cbranch_scc1 K2_B{nb-1}")
        E.vm = []
        for j in range(nb): issue(j)
        for j in range(nb): comp(j)
        if nb == 4:
            E.e(f"s_sub_u32 s{sK}, s{sK}, 4")
            E.e("s_branch K2_BATCH")
        else:
            E.e("s_branch K2_FIN")
        if nb > 1: E.label(f"K2_B{nb-1}")
    E.label("K2_FIN")
    E.e("s_waitcnt vmcnt(0)")
    finish_node(E)
    E.e(f"v_mov_b32 v100, {L_CTR}")
    E.e("v_mov_b32 v101, 1")
    E.e("s_mov_b64 exec, 1")
    E.e("ds_add_rtn_u32 v101, v100, v101 offset:4")
    E.e("s_waitcnt lgkmcnt(0)")
    E.e("s_mov_b64 exec, -1")
    E.e(f"v_readfirstlane_b32 s{sJ}, v101")
    E.e(f"s_cmp_ge_u32 s{sJ}, {BINW}")
    E.e("s_cbranch_scc1 K2_END")
    E.e(f"s_add_u32 s{sN}, s{sNB}, s{sJ}")
    E.e(f"s_lshl_b32 s{sROW}, s{sN}, 11")
    E.vm = []
    res_loads(E)
    E.e("s_branch K2_NODE")

    E.label("K2_SLOW")
    E.e(f"s_mov_b32 s{sJ}, s{sWAVE}")
    E.label("K2_SNODE")
    for a in range(16): E.e(f"v_mov_b32 v{ACC+a}, 0")
    E.e("s_mov_b32 s80, 0")
    E.label("K2_SSEG")
    E.e("s_lshl_b32 s81, s80, 2")
    E.e("v_mov_b32 v3, s81")
    E.e(f"buffer_load_dword v100, v3, s[{CNT}:{CNT+3}], 0 offen")
    E.e("s_waitcnt vmcnt(0)")
    E.e("v_readfirstlane_b32 s82, v100")
    E.e("s_mov_b32 s83, 0")
    E.label("K2_SCHUNK")
    E.e("s_cmp_ge_u32 s83, s82")
    E.e("s_cbranch_scc1 K2_SSEGEND")
    E.e(f"s_mul_i32 s84, s80, {SEG}")
    E.e("s_add_u32 s84, s84, s83")
    E.e(f"v_add_u32 v100, s84, v{vLANE}")
    E.e("v_lshlrev_b32 v100, 5, v100")
    E.e(f"buffer_load_dword v101, v100, s[{REC}:{REC+3}], 0 offen offset:28")
    E.e(f"v_add_u32 v102, s83, v{vLANE}")
    E.e("s_waitcnt vmcnt(0)")
    E.e(f"v_cmp_eq_u32 vcc, s{sN}, v101")
    E.e("v_cmp_gt_u32 s[86:87], s82, v102")
    E.e("s_nop 1")
    E.e("s_and_b64 s[86:87], s[86:87], vcc")
    E.label("K2_SEDGE")
    E.e("s_cmp_eq_u64 s[86:87], 0")
    E.e("s_cbranch_scc1 K2_SCHUNKEND")
    E.e("s_ff1_i32_b64 s85, s[86:87]")
    E.e("s_bitset0_b64 s[86:87], s85")
    E.e("s_add_u32 s85, s85, s84")
    E.e("s_lshl_b32 s85, s85, 5")
    E.e("v_mov_b32 v100, s85")
    E.e(f"buffer_load_dwordx4 v[{RC}:{RC+3}], v100, s[{REC}:{REC+3}], 0 offen")
    E.e(f"buffer_load_dwordx4 v[{RC+4}:{RC+7}], v100, s[{REC}:{REC+3}], 0 offen offset:16")
    E.e("s_waitcnt vmcnt(0)")
    E.e(f"v_readfirstlane_b32 s{sT0}, v{RC}")
    E.e(f"s_mul_i32 s{sOP}, s{sT0}, 1536")
    E.e(f"s_lshl_b32 s{sOV}, s{sT0}, 11")
    E.vm = []
    edge_loads(E, LD, "x")
    E.e("s_waitcnt vmcnt(0)")
    edge_compute(E, LD)
    E.e("s_branch K2_SEDGE")
    E.label("K2_SCHUNKEND")
    E.e("s_add_u32 s83, s83, 64")
    E.e("s_branch K2_SCHUNK")
    E.label("K2_SSEGEND")
    E.e("s_add_u32 s80, s80, 1")
    E.e(f"s_cmp_lt_u32 s80, {NWG}")
    E.e("s_cbranch_scc1 K2_SSEG")
    E.e("s_waitcnt vmcnt(0)")
    finish_node(E)
    E.e(f"s_add_u32 s{sJ}, s{sJ}, 16")
    E.e(f"s_cmp_ge_u32 s{sJ}, {BINW}")
    E.e("s_cbranch_scc1 K2_END")
    E.e(f"s_add_u32 s{sN}, s{sNB}, s{sJ}")
    E.e(f"s_lshl_b32 s{sROW}, s{sN}, 11")
    res_loads(E)
    E.e("s_branch K2_SNODE")
    E.label("K2_END")
    E.e("s_endpgm")
```

```python
import sys
from common import *
import k1, k2
ref = open('gather_scatter__molecular_angular_painn__graph.s.ref').read()
hdr = [l for l in ref.split('\n') if l.startswith('; Kernarg') or l.startswith(';   offset')]
out = "\n".join(hdr) + "\n"
out += f"; @launch kernel=k_phi_kernel grid=({NWG},1,1) block=(512,1,1) lds={k1.K1_LDS}\n"
out += f"; @launch kernel=k_edge_kernel grid=({NWG},1,1) block=(1024,1,1) lds={k2.K2_LDS}\n"
out += '.amdgcn_target "amdgcn-amd-amdhsa--gfx950"\n.text\n'
def kern(name, fn):
    E = Emitter(); fn(E)
    return f".globl {name}\n.p2align 8\n.type {name},@function\n" + E.text()
out += kern("k_phi_kernel", k1.k1)
out += kern("k_edge_kernel", k2.k2)
def desc(name, nv, acc, ns):
    return f""".amdhsa_kernel {name}
  .amdhsa_next_free_vgpr {nv}
  .amdhsa_next_free_sgpr {ns}
  .amdhsa_accum_offset {acc}
  .amdhsa_group_segment_fixed_size 0
  .amdhsa_kernarg_size 88
  .amdhsa_user_sgpr_count 2
  .amdhsa_user_sgpr_kernarg_segment_ptr 1
  .amdhsa_system_sgpr_workgroup_id_x 1
.end_amdhsa_kernel
"""
out += '.section .rodata,"a"\n.p2align 6\n'
out += desc("k_phi_kernel", k1.NV + 40, k1.NV, 102)
out += ".p2align 6\n"
out += desc("k_edge_kernel", k2.NV2, k2.NV2, 102)
dst = sys.argv[1] if len(sys.argv) > 1 else 'gather_scatter__molecular_angular_painn__graph.s'
open(dst, 'w').write(out)
print("wrote", dst, len(out))
```
